```python
import torch

def _softmax(x, axis=-1):
    return torch.softmax(x, dim=axis)
def _gelu(x):
    return torch.nn.functional.gelu(x, approximate="tanh")
def _silu(x):
    return torch.nn.functional.silu(x)
def _sigmoid(x):
    return torch.sigmoid(x)
def _layernorm(x, axis=-1, eps=1e-5):
    m = x.mean(dim=axis, keepdim=True)
    v = x.var(dim=axis, keepdim=True, unbiased=False)
    return (x - m) / torch.sqrt(v + eps)
def _scatter_add(tgt, idx, src, axis=0):
    return tgt.clone().index_add_(axis, idx, src)
def _segment_sum(src, seg, n):
    out = torch.zeros((n,) + src.shape[1:], dtype=src.dtype)
    return out.index_add_(0, seg, src)
def _pad(x, pw):
    flat = tuple(v for pair in reversed(pw) for v in pair)
    return torch.nn.functional.pad(x, flat)

kernel_name = 'standalone__instancenorm__prompt'

def setup_inputs():

    _w = (lambda a: (lambda t: t.to(torch.bfloat16) if t.is_floating_point() else t)(torch.as_tensor(a)))
    B, C, H, W = 1, 448, 4096, 16
    return {
        "x": _w(abs((lambda *s: torch.randn(*s, dtype=torch.bfloat16) * 0.05)(B, C, H, W))),
        "g": _w((lambda *s: torch.randn(*s, dtype=torch.bfloat16) * 0.05)(C) + 1.0),
        "b": _w((lambda *s: torch.randn(*s, dtype=torch.bfloat16) * 0.4)(C)),
    }

def reference(x, g, b):
    mu = x.mean(axis=(-2, -1), keepdims=True)
    var = ((x - mu) ** 2).mean(axis=(-2, -1), keepdims=True)
    xhat = (x - mu) / torch.sqrt(var + 1e-5)
    return xhat * g.reshape(1, -1, 1, 1) + b.reshape(1, -1, 1, 1)
```

```python
import sys, argparse

HEADER = """; Kernarg layout for this problem (48 bytes, ptrs only, base s[0:1]):
"""
KN = "standalone__instancenorm__prompt_kernel"

def gen(nt=1024, layout="wave", ldf="", stf="", mimic=2, vgpr_pad=None):
    nw = nt // 64
    nld = 131072 // (nt * 16)
    nd = nld * 4
    o = []
    A = o.append
    lds = 256
    A(HEADER.rstrip())
    A(f"; @launch grid=(448,1,1) block=({nt},1,1) lds={lds}")
    A('.amdgcn_target "amdgcn-amd-amdhsa--gfx950"')
    A(".text")
    A(f".globl {KN}")
    A(".p2align 8")
    A(f".type {KN},@function")
    A(f"{KN}:")
    D0 = 16
    vtid, vaddr = 0, 1
    T = [2,3,4,5,6,7,8,9,10,11,12,13,14,15]
    A("    s_cmp_ge_u32 s2, 448")
    A("    s_cbranch_scc1 L_end")
    A("    s_load_dwordx4 s[4:7], s[0:1], 0")
    A("    s_load_dwordx4 s[8:11], s[0:1], 16")
    A("    s_lshl_b32 s3, s2, 17")
    if layout == "wave":
        per_wave = 131072 // nw
        sh = per_wave.bit_length() - 1
        A("    v_lshrrev_b32 v2, 6, v0")
        A("    v_and_b32 v3, 63, v0")
        A(f"    v_lshlrev_b32 v2, {sh}, v2")
        A("    v_lshl_add_u32 v1, v3, 4, v2")
        offs = [j * 1024 for j in range(nld)]
    else:
        A("    v_lshlrev_b32 v1, 4, v0")
        offs = [j * nt * 16 for j in range(nld)]
    soffs = sorted(set(x & ~4095 for x in offs))
    sreg = {}
    r = 32
    for s in soffs:
        if s == 0:
            sreg[s] = "0"
        else:
            A(f"    s_mov_b32 s{r}, {s}")
            sreg[s] = f"s{r}"
            r += 1
    A("    s_lshl_b32 s20, s2, 1")
    A("    s_and_b32 s21, s20, -4")
    A("    s_mov_b32 s14, 0x20000")
    A("    s_mov_b32 s15, 0x20000")
    A("    s_mov_b32 s18, 0x20000")
    A("    s_mov_b32 s19, 0x20000")
    A("    s_waitcnt lgkmcnt(0)")
    A("    s_add_u32 s12, s4, s3")
    A("    s_addc_u32 s13, s5, 0")
    for j, off in enumerate(offs):
        imm = off & 4095
        A(f"    buffer_load_dwordx4 v[{D0+4*j}:{D0+4*j+3}], v1, s[12:15], {sreg[off & ~4095]} offen offset:{imm} {ldf}".rstrip())
    A("    s_load_dword s22, s[6:7], s21")
    A("    s_load_dword s23, s[8:9], s21")
    A("    s_add_u32 s16, s10, s3")
    A("    s_addc_u32 s17, s11, 0")
    A("    s_mov_b32 s24, 0x3f803f80")
    A("    s_mov_b32 s25, 0xffff0000")
    A("    v_lshrrev_b32 v14, 6, v0")
    A("    v_lshlrev_b32 v14, 2, v14")
    A(f"    v_and_b32 v15, {nw-1}, v0")
    A("    v_lshlrev_b32 v15, 2, v15")
    for a in (2,3,4,5):
        A(f"    v_mov_b32 v{a}, 0")
    for j in range(nld):
        A(f"    s_waitcnt vmcnt({nld-1-j})")
        for k in range(4):
            A(f"    v_dot2c_f32_bf16 v{2+k}, s24, v{D0+4*j+k}")
    def wave_reduce_block(lds_off):
        A("    s_nop 2")
        A("    v_add_f32 v2, v2, v3")
        A("    v_add_f32 v4, v4, v5")
        A("    v_add_f32 v2, v2, v4")
        A("    s_nop 1")
        A("    v_add_f32_dpp v2, v2, v2 quad_perm:[1,0,3,2] row_mask:0xf bank_mask:0xf")
        A("    s_nop 1")
        A("    v_add_f32_dpp v2, v2, v2 quad_perm:[2,3,0,1] row_mask:0xf bank_mask:0xf")
        A("    s_nop 1")
        A("    v_add_f32_dpp v2, v2, v2 row_half_mirror row_mask:0xf bank_mask:0xf")
        A("    s_nop 1")
        A("    v_add_f32_dpp v2, v2, v2 row_mirror row_mask:0xf bank_mask:0xf")
        A("    s_nop 1")
        A("    v_add_f32_dpp v2, v2, v2 row_bcast:15 row_mask:0xa bank_mask:0xf")
        A("    s_nop 1")
        A("    v_add_f32_dpp v2, v2, v2 row_bcast:31 row_mask:0xc bank_mask:0xf")
        A("    s_nop 1")
        A("    v_readlane_b32 s26, v2, 63")
        A("    s_nop 1")
        A("    v_mov_b32 v3, s26")
        A(f"    ds_write_b32 v14, v3 offset:{lds_off}")
        A("    s_waitcnt lgkmcnt(0)")
        A("    s_barrier")
        A(f"    ds_read_b32 v2, v15 offset:{lds_off}")
        A("    s_waitcnt lgkmcnt(0)")
        steps = ["quad_perm:[1,0,3,2]", "quad_perm:[2,3,0,1]", "row_half_mirror", "row_mirror"]
        n = nw.bit_length() - 1
        for s in steps[:n]:
            A("    s_nop 1")
            A(f"    v_add_f32_dpp v2, v2, v2 {s} row_mask:0xf bank_mask:0xf")
    wave_reduce_block(0)
    A("    v_mul_f32 v2, 0x37800000, v2")
    A("    v_cvt_pk_bf16_f32 v2, v2, v2")
    A("    v_and_b32 v6, s25, v2")
    A("    v_mov_b32 v7, v6")
    for a in (2,3,4,5):
        A(f"    v_mov_b32 v{a}, 0")
    if mimic >= 1:
        for i in range(0, nd, 2):
            d0, d1 = D0 + i, D0 + i + 1
            A(f"    v_lshlrev_b32 v8, 16, v{d0}")
            A(f"    v_and_b32 v9, s25, v{d0}")
            A(f"    v_lshlrev_b32 v10, 16, v{d1}")
            A(f"    v_and_b32 v11, s25, v{d1}")
            A(f"    v_pk_add_f32 v[8:9], v[8:9], v[6:7] neg_lo:[0,1] neg_hi:[0,1]")
            A(f"    v_pk_add_f32 v[10:11], v[10:11], v[6:7] neg_lo:[0,1] neg_hi:[0,1]")
            A(f"    v_cvt_pk_bf16_f32 v{d0}, v8, v9")
            A(f"    v_cvt_pk_bf16_f32 v{d1}, v10, v11")
            A(f"    v_dot2c_f32_bf16 v{2+(i%4)}, v{d0}, v{d0}")
            A(f"    v_dot2c_f32_bf16 v{3+(i%4)}, v{d1}, v{d1}")
    else:
        for i in range(0, nd, 2):
            d0, d1 = D0 + i, D0 + i + 1
            A(f"    v_lshlrev_b32 v8, 16, v{d0}")
            A(f"    v_and_b32 v9, s25, v{d0}")
            A(f"    v_lshlrev_b32 v10, 16, v{d1}")
            A(f"    v_and_b32 v11, s25, v{d1}")
            A(f"    v_pk_add_f32 v[8:9], v[8:9], v[6:7] neg_lo:[0,1] neg_hi:[0,1]")
            A(f"    v_pk_add_f32 v[10:11], v[10:11], v[6:7] neg_lo:[0,1] neg_hi:[0,1]")
            A(f"    v_pk_fma_f32 v[2:3], v[8:9], v[8:9], v[2:3]")
            A(f"    v_pk_fma_f32 v[4:5], v[10:11], v[10:11], v[4:5]")
    wave_reduce_block(128)
    A("    v_mul_f32 v2, 0x37800000, v2")
    A("    v_cvt_pk_bf16_f32 v2, v2, v2")
    A("    v_and_b32 v2, s25, v2")
    A("    v_add_f32 v2, 0x3727c5ac, v2")
    A("    v_cvt_pk_bf16_f32 v2, v2, v2")
    A("    v_and_b32 v2, s25, v2")
    A("    v_sqrt_f32 v2, v2")
    A("    s_nop 0")
    A("    v_cvt_pk_bf16_f32 v2, v2, v2")
    A("    v_and_b32 v2, s25, v2")
    A("    v_rcp_f32 v4, v2")
    A("    s_bitcmp1_b32 s2, 0")
    A("    s_cselect_b32 s26, 0, 16")
    A("    s_lshl_b32 s22, s22, s26")
    A("    s_and_b32 s22, s22, s25")
    A("    s_lshl_b32 s23, s23, s26")
    A("    s_and_b32 s23, s23, s25")
    A("    v_fma_f32 v3, -v2, v4, 1.0")
    A("    v_fma_f32 v4, v3, v4, v4")
    if mimic >= 2:
        A("    v_mov_b32 v5, v4")
        A("    v_mov_b32 v2, s22")
        A("    v_mov_b32 v3, s22")
        A("    v_mov_b32 v6, s23")
        A("    v_mov_b32 v7, s23")
        for j in range(nld):
            for i in range(4*j, 4*j+4, 2):
                d0, d1 = D0 + i, D0 + i + 1
                for (op, opnd) in (("mul", "v[4:5]"), ("mul", "v[2:3]"), ("add", "v[6:7]")):
                    A(f"    v_lshlrev_b32 v8, 16, v{d0}")
                    A(f"    v_and_b32 v9, s25, v{d0}")
                    A(f"    v_lshlrev_b32 v10, 16, v{d1}")
                    A(f"    v_and_b32 v11, s25, v{d1}")
                    A(f"    v_pk_{op}_f32 v[8:9], v[8:9], {opnd}")
                    A(f"    v_pk_{op}_f32 v[10:11], v[10:11], {opnd}")
                    A(f"    v_cvt_pk_bf16_f32 v{d0}, v8, v9")
                    A(f"    v_cvt_pk_bf16_f32 v{d1}, v10, v11")
            off = offs[j]
            A(f"    buffer_store_dwordx4 v[{D0+4*j}:{D0+4*j+3}], v1, s[16:19], {sreg[off & ~4095]} offen offset:{off & 4095} {stf}".rstrip())
    else:
        A("    v_mul_f32 v4, s22, v4")
        A("    v_mov_b32 v5, v4")
        if mimic == 1:
            A("    v_mov_b32 v6, s23")
        else:
            A("    v_fma_f32 v6, -v6, v4, s23")
        A("    v_mov_b32 v7, v6")
        for j in range(nld):
            for i in range(4*j, 4*j+4, 2):
                d0, d1 = D0 + i, D0 + i + 1
                A(f"    v_lshlrev_b32 v8, 16, v{d0}")
                A(f"    v_and_b32 v9, s25, v{d0}")
                A(f"    v_lshlrev_b32 v10, 16, v{d1}")
                A(f"    v_and_b32 v11, s25, v{d1}")
                A(f"    v_pk_fma_f32 v[8:9], v[8:9], v[4:5], v[6:7]")
                A(f"    v_pk_fma_f32 v[10:11], v[10:11], v[4:5], v[6:7]")
                A(f"    v_cvt_pk_bf16_f32 v{d0}, v8, v9")
                A(f"    v_cvt_pk_bf16_f32 v{d1}, v10, v11")
            off = offs[j]
            A(f"    buffer_store_dwordx4 v[{D0+4*j}:{D0+4*j+3}], v1, s[16:19], {sreg[off & ~4095]} offen offset:{off & 4095} {stf}".rstrip())
    A("L_end:")
    A("    s_endpgm")
    nv = D0 + nd
    if vgpr_pad: nv = max(nv, vgpr_pad)
    A('.section .rodata,"a"')
    A(".p2align 6")
    A(f".amdhsa_kernel {KN}")
    A(f"  .amdhsa_next_free_vgpr {nv}")
    A(f"  .amdhsa_next_free_sgpr 72")
    A(f"  .amdhsa_accum_offset {min(256,(nv+3)//4*4)}")
    A("  .amdhsa_group_segment_fixed_size 0")
    A("  .amdhsa_kernarg_size 48")
    A("  .amdhsa_user_sgpr_count 2")
    A("  .amdhsa_user_sgpr_kernarg_segment_ptr 1")
    A("  .amdhsa_system_sgpr_workgroup_id_x 1")
    A("  .amdhsa_float_denorm_mode_32 3")
    A(".end_amdhsa_kernel")
    return "\n".join(o) + "\n"

if __name__ == "__main__":
    ap = argparse.ArgumentParser()
    ap.add_argument("--nt", type=int, default=1024)
    ap.add_argument("--layout", default="wave")
    ap.add_argument("--ldf", default="")
    ap.add_argument("--stf", default="")
    ap.add_argument("--mimic", type=int, default=2)
    ap.add_argument("--vgpr", type=int, default=None)
    ap.add_argument("-o", default="/dev/stdout")
    a = ap.parse_args()
    open(a.o, "w").write(gen(a.nt, a.layout, a.ldf, a.stf, a.mimic, a.vgpr))
```

```python
import sys, re
from gen1 import gen, KN

def instrument(asm, nt, q, k):
    nw = nt // 64
    lines = asm.split("\n")
    out = []
    nbar = 0
    seen_last_wait = False
    for ln in lines:
        if ln.startswith("; @launch"):
            out.append(f"; @launch kernel={KN} grid=(448,1,1) block=({nt},1,1) lds=256")
            out.append(f"; @launch kernel=diag_reader_kernel grid=(1,1,1) block=(1024,1,1) lds=256")
            continue
        if ln.strip() == "s_load_dwordx4 s[4:7], s[0:1], 0":
            out.append("    s_memrealtime s[60:61]")
            out.append("    s_memtime s[68:69]")
            out.append("    s_load_dwordx2 s[58:59], s[0:1], 40")
        out.append(ln)
        if ln.strip() == "s_waitcnt vmcnt(0)" and not seen_last_wait:
            seen_last_wait = True
            out.append("    s_memrealtime s[62:63]")
        if ln.strip() == "s_barrier":
            nbar += 1
            if nbar == 2:
                out.append("    s_memrealtime s[64:65]")
        if ln.strip() == "L_end:":
            out.pop()
            out.append("    s_waitcnt vmcnt(0)")
            out.append("    s_memrealtime s[66:67]")
            out.append("    s_memtime s[70:71]")
            out.append("    s_waitcnt lgkmcnt(0)")
            out.append("    s_sub_u32 s70, s70, s68")
            out.append("    v_mov_b32 v4, s60")
            out.append("    v_mov_b32 v5, s62")
            out.append("    v_mov_b32 v6, s64")
            out.append("    v_mov_b32 v7, s66")
            out.append("    v_mov_b32 v8, s70")
            out.append("    s_getreg_b32 s70, hwreg(HW_REG_XCC_ID)")
            out.append("    s_getreg_b32 s71, hwreg(HW_REG_HW_ID)")
            out.append("    v_mov_b32 v9, s70")
            out.append("    v_mov_b32 v10, s71")
            out.append("    v_mov_b32 v11, 0")
            out.append("    v_lshrrev_b32 v2, 6, v0")
            out.append(f"    s_mul_i32 s3, s2, {nw}")
            out.append("    v_add_u32 v2, s3, v2")
            out.append("    v_lshlrev_b32 v2, 5, v2")
            out.append("    v_and_b32 v3, 63, v0")
            out.append("    v_cmp_eq_u32 vcc, 0, v3")
            out.append("    s_and_saveexec_b64 s[56:57], vcc")
            out.append("    global_store_dwordx4 v2, v[4:7], s[58:59]")
            out.append("    global_store_dwordx4 v2, v[8:11], s[58:59] offset:16")
            out.append("L_end:")
    asm = "\n".join(out)
    asm = asm.replace(".amdhsa_next_free_sgpr 72", ".amdhsa_next_free_sgpr 74")
    nent = 448 * nw
    per = (nent + 1023) // 1024
    R = []
    A = R.append
    A(".text")
    A(".globl diag_reader_kernel")
    A(".p2align 8")
    A(".type diag_reader_kernel,@function")
    A("diag_reader_kernel:")
    A("    s_cmp_ge_u32 s2, 1")
    A("    s_cbranch_scc1 R_end")
    A("    s_memrealtime s[20:21]")
    A("    s_load_dwordx4 s[4:7], s[0:1], 32")
    A("    s_waitcnt lgkmcnt(0)")
    A("    s_mov_b32 s8, s6")
    A("    s_mov_b32 s9, s7")
    A(f"    s_mov_b32 s10, {nent*32}")
    A("    s_mov_b32 s11, 0x20000")
    A("    v_mov_b32 v1, 0")
    A("    v_mov_b32 v4, -1")
    A("    v_mov_b32 v5, -1")
    A("    v_mov_b32 v6, -1")
    A("    v_mov_b32 v7, -1")
    A("    v_mov_b32 v8, 0")
    A("    v_mov_b32 v9, 0")
    A("    v_mov_b32 v10, 0")
    A("    v_mov_b32 v11, 0")
    A("    ds_write_b128 v1, v[4:7]")
    A("    ds_write_b128 v1, v[8:11] offset:16")
    A("    ds_write_b128 v1, v[8:11] offset:32")
    A("    s_waitcnt lgkmcnt(0)")
    A("    s_barrier")
    for j in range(per):
        A(f"    v_add_u32 v2, {j*1024}, v0")
        A(f"    v_cmp_gt_u32 vcc, {nent}, v2")
        A(f"    s_and_saveexec_b64 s[12:13], vcc")
        A(f"    s_cbranch_execz R_skip{j}")
        A("    v_lshlrev_b32 v2, 5, v2")
        A("    buffer_load_dwordx4 v[4:7], v2, s[8:11], 0 offen")
        A("    buffer_load_dword v8, v2, s[8:11], 0 offen offset:16")
        A("    s_waitcnt vmcnt(0)")
        for i in range(4):
            A(f"    v_sub_u32 v{4+i}, s20, v{4+i}")
        for i in range(4):
            A(f"    ds_min_u32 v1, v{4+i} offset:{4*i}")
            A(f"    ds_max_u32 v1, v{4+i} offset:{16+4*i}")
        A("    ds_max_u32 v1, v8 offset:32")
        A("    s_waitcnt lgkmcnt(0)")
        A(f"R_skip{j}:")
        A("    s_mov_b64 exec, s[12:13]")
    A("    s_waitcnt lgkmcnt(0)")
    A("    s_barrier")
    A("    v_cmp_gt_u32 vcc, 64, v0")
    A("    s_and_saveexec_b64 s[12:13], vcc")
    A("    s_cbranch_execz R_end")
    A("    ds_read_b128 v[4:7], v1")
    A("    ds_read_b128 v[8:11], v1 offset:16")
    A("    ds_read_b32 v12, v1 offset:32")
    A("    s_waitcnt lgkmcnt(0)")
    A("    v_sub_u32 v16, v8, v4")
    A("    v_sub_u32 v17, v8, v9")
    A("    v_sub_u32 v18, v8, v5")
    A("    v_sub_u32 v19, v8, v10")
    A("    v_sub_u32 v20, v8, v6")
    A("    v_sub_u32 v21, v8, v11")
    A("    v_sub_u32 v22, v8, v7")
    A("    v_mov_b32 v23, v7")
    A("    v_lshrrev_b32 v24, 4, v12")
    A("    v_mov_b32 v25, 0")
    A("    v_mov_b32 v26, 0")
    A("    v_mov_b32 v27, 0")
    A("    v_cmp_eq_u32 vcc, 0, v0")
    A("    s_and_saveexec_b64 s[14:15], vcc")
    A("    global_store_dwordx4 v1, v[16:19], s[4:5]")
    A("    global_store_dwordx4 v1, v[20:23], s[4:5] offset:16")
    A("    global_store_dwordx4 v1, v[24:27], s[4:5] offset:32")
    A("    s_nop 1")
    A(f"    v_readfirstlane_b32 s16, v{16+q}")
    A("    s_nop 4")
    A(f"    s_mul_i32 s16, s16, {k}")
    A("    s_min_u32 s16, s16, 100000")
    A("    s_memrealtime s[22:23]")
    A("    s_waitcnt lgkmcnt(0)")
    A("R_loop:")
    A("    s_memrealtime s[24:25]")
    A("    s_waitcnt lgkmcnt(0)")
    A("    s_sub_u32 s26, s24, s22")
    A("    s_cmp_lt_u32 s26, s16")
    A("    s_cbranch_scc1 R_loop")
    A("R_end:")
    A("    s_endpgm")
    A('.section .rodata,"a"')
    A(".p2align 6")
    A(".amdhsa_kernel diag_reader_kernel")
    A("  .amdhsa_next_free_vgpr 32")
    A("  .amdhsa_next_free_sgpr 32")
    A("  .amdhsa_accum_offset 32")
    A("  .amdhsa_group_segment_fixed_size 0")
    A("  .amdhsa_kernarg_size 48")
    A("  .amdhsa_user_sgpr_count 2")
    A("  .amdhsa_user_sgpr_kernarg_segment_ptr 1")
    A("  .amdhsa_system_sgpr_workgroup_id_x 1")
    A(".end_amdhsa_kernel")
    return asm + "\n".join(R) + "\n"

if __name__ == "__main__":
    asm = open(sys.argv[1]).read()
    open(sys.argv[5], "w").write(instrument(asm, int(sys.argv[2]), int(sys.argv[3]), int(sys.argv[4])))
```
